```python
import torch

def _softmax(x, axis=-1):
    return torch.softmax(x, dim=axis)
def _gelu(x):
    return torch.nn.functional.gelu(x, approximate="tanh")
def _silu(x):
    return torch.nn.functional.silu(x)
def _sigmoid(x):
    return torch.sigmoid(x)
def _layernorm(x, axis=-1, eps=1e-5):
    m = x.mean(dim=axis, keepdim=True)
    v = x.var(dim=axis, keepdim=True, unbiased=False)
    return (x - m) / torch.sqrt(v + eps)
def _scatter_add(tgt, idx, src, axis=0):
    return tgt.clone().index_add_(axis, idx, src)
def _segment_sum(src, seg, n):
    out = torch.zeros((n,) + src.shape[1:], dtype=src.dtype)
    return out.index_add_(0, seg, src)
def _pad(x, pw):
    flat = tuple(v for pair in reversed(pw) for v in pair)
    return torch.nn.functional.pad(x, flat)

kernel_name = 'gated_mix__ssm_conv_s4d__geglu_ffn__prompt'

def setup_inputs():

    _w = (lambda a: (lambda t: t.to(torch.bfloat16) if t.is_floating_point() else t)(torch.as_tensor(a)))
    def _A_setup():
        Bsz, L, D, N = 1, 2048, 640, 192
        return {
            "u": _w((lambda *s: torch.randn(*s, dtype=torch.bfloat16) * 0.05)(Bsz, L, D)),
            "log_A_real": _w((lambda *s: torch.randn(*s, dtype=torch.bfloat16) * 6.4)(D, N) * 0.5),
            "A_imag": _w((lambda *s: torch.randn(*s, dtype=torch.bfloat16) * 0.05)(D, N) * 3.14),
            "C_real": _w((lambda *s: torch.randn(*s, dtype=torch.bfloat16) * 0.05)(D, N) / N ** 0.5),
            "C_imag": _w((lambda *s: torch.randn(*s, dtype=torch.bfloat16) * 0.05)(D, N) / N ** 0.5),
            "log_dt": _w((lambda *s: torch.randn(*s, dtype=torch.bfloat16) * 0.05)(D) * 0.5 - 4.0),
            "D_skip": _w((lambda *s: torch.randn(*s, dtype=torch.bfloat16) * 0.05)(D)),
        }
    _A_in = _A_setup()

    def _B_setup():
        B, S, D, F = 1, 2048, 640, 1536
        return {
            "x": _w((lambda *s: torch.randn(*s, dtype=torch.bfloat16) * 0.05)(B, S, D)),
            "w_gate": _w((lambda *s: torch.randn(*s, dtype=torch.bfloat16) * 0.05)(D, F)),
            "w_up": _w((lambda *s: torch.randn(*s, dtype=torch.bfloat16) * 0.05)(D, F)),
            "w_down": _w((lambda *s: torch.randn(*s, dtype=torch.bfloat16) * 0.05)(F, D)),
        }
    _B_in = _B_setup()

    return {
        "A_u": _A_in["u"],
        "A_log_A_real": _A_in["log_A_real"],
        "A_A_imag": _A_in["A_imag"],
        "A_C_real": _A_in["C_real"],
        "A_C_imag": _A_in["C_imag"],
        "A_log_dt": _A_in["log_dt"],
        "A_D_skip": _A_in["D_skip"],
        "B_x": _B_in["x"],
        "B_w_gate": _B_in["w_gate"],
        "B_w_up": _B_in["w_up"],
        "B_w_down": _B_in["w_down"],
        "gate_w": _w((lambda *s: torch.randn(*s, dtype=torch.bfloat16) * 0.05)(640) * 16.0),
    }

def reference(A_u, A_log_A_real, A_A_imag, A_C_real, A_C_imag, A_log_dt, A_D_skip, B_x, B_w_gate, B_w_up, B_w_down, gate_w):
    def _A_ref(u, log_A_real, A_imag, C_real, C_imag, log_dt, D_skip):
        L = u.shape[1]
        dt = torch.exp(log_dt)
        A = -torch.exp(log_A_real) + 1j * A_imag
        C = (C_real + 1j * C_imag) * dt[:, None]
        pos = (lambda x, dt: x.to(dt))(torch.arange(L), log_dt.dtype)
        P = torch.exp((A * dt[:, None])[:, :, None] * pos[None, None, :])
        K = 2.0 * torch.einsum("dn,dnl->dl", C, P).real
        L2 = 2 * L
        u_t = (lambda x, *d: x.permute(*d))(u, 0, 2, 1)
        Kf = (lambda x, *a, **k: torch.fft.rfft(x.float(), *a, **k))(K, L2)
        Uf = (lambda x, *a, **k: torch.fft.rfft(x.float(), *a, **k))(u_t, L2)
        y = (lambda x, *a, **k: torch.fft.irfft(x, *a, **k).to(torch.bfloat16))(Uf * Kf[None, :, :], L2)[:, :, :L]
        y = (lambda x, *d: x.permute(*d))(y, 0, 2, 1)
        return y + u * D_skip[None, None, :]

    def _B_ref(x, w_gate, w_up, w_down):
        return (_gelu(x @ w_gate) * (x @ w_up)) @ w_down

    x = A_u
    g = _sigmoid((x * gate_w).sum(-1, keepdims=True))
    a = _A_ref(x, A_log_A_real, A_A_imag, A_C_real, A_C_imag, A_log_dt, A_D_skip)
    b = _B_ref(x, B_w_gate, B_w_up, B_w_down)
    return g * a + (1 - g) * b
```

```python
import re

TRANS = ('v_exp_f32','v_log_f32','v_rcp_f32','v_rsq_f32','v_sqrt_f32','v_sin_f32','v_cos_f32')

def _regs(tok):
    tok = tok.strip()
    tok = tok.lstrip('-').strip('|')
    m = re.fullmatch(r'([vsa])\[(\d+):(\d+)\]', tok)
    if m: return {(m.group(1), i) for i in range(int(m.group(2)), int(m.group(3))+1)}
    m = re.fullmatch(r'([vsa])(\d+)', tok)
    if m: return {(m.group(1), int(m.group(2)))}
    if tok in ('vcc','vcc_lo','vcc_hi'): return {('x','vcc')}
    if tok == 'm0': return {('x','m0')}
    if tok in ('exec','exec_lo','exec_hi'): return {('x','exec')}
    return set()

class Ins:
    def __init__(s, txt):
        s.txt = txt
        t = txt.split(';')[0].strip()
        parts = t.split(None, 1)
        s.op = parts[0]
        rest = parts[1] if len(parts) > 1 else ''
        ops = [o.strip() for o in re.split(r',(?![^\[]*\])', rest)] if rest else []
        mods = ''
        if ops:
            last = ops[-1].split(None, 1)
            ops[-1] = last[0]
            mods = last[1] if len(last) > 1 else ''
        s.ops = ops; s.mods = mods
        op = s.op
        s.kind = 'other'; s.dst = set(); s.src = set(); s.passes = 0; s.srcC = set(); s.srcAB = set()
        R = [_regs(o) for o in ops]
        allr = set().union(*R) if R else set()
        if op.startswith('v_mfma'):
            s.kind = 'mfma'; s.dst = R[0]; s.srcAB = R[1] | R[2]; s.srcC = R[3]; s.src = s.srcAB | s.srcC
            s.passes = 8 if '32x32' in op else 4
        elif op.startswith('v_'):
            s.kind = 'valu'
            if op.startswith('v_cmp'):
                s.dst = R[0]; s.src = set().union(*R[1:])
            elif op.startswith('v_permlane') and 'swap' in op:
                s.dst = R[0] | R[1]; s.src = R[0] | R[1]
            else:
                s.dst = R[0]; s.src = set().union(*R[1:]) if len(R) > 1 else set()
                if op.startswith('v_cndmask') and len(ops) == 3: s.src |= {('x','vcc')}
                if op.startswith(('v_fmac','v_mac','v_pk_fmac','v_dot2c','v_writelane')) : s.src |= R[0]
                if '_co_' in op: s.dst |= R[1]
        elif op.startswith('ds_'):
            s.kind = 'ds'
            if op.startswith('ds_read') or '_rtn' in op or op.startswith(('ds_bpermute','ds_permute','ds_swizzle')):
                s.dst = R[0]; s.src = set().union(*R[1:])
                if 'd16' in op: s.src |= R[0]
            else: s.src = allr
        elif op.startswith(('buffer_','global_')):
            s.kind = 'vmem'
            s.islds = ' lds' in (' ' + mods)
            if 'load' in op and not s.islds:
                s.dst = R[0]; s.src = set().union(*R[1:])
            else:
                s.src = allr
                if s.islds: s.src |= {('x','m0')}
            s.wide_store = ('store' in op) and ('x3' in op or 'x4' in op)
            s.data = R[0] if 'store' in op else set()
        elif op.startswith('s_'):
            s.kind = 'salu'
            if op in ('s_nop','s_waitcnt','s_barrier','s_endpgm','s_branch','s_sleep','s_setprio') or op.startswith('s_cbranch') or op.startswith('s_cmp') or op.startswith('s_bitcmp'):
                s.src = allr
            else:
                s.dst = R[0] if R else set(); s.src = set().union(*R[1:]) if len(R) > 1 else set()
                if 'saveexec' in op: s.dst |= {('x','exec')}
        s.states = 1
        if op == 's_nop': s.states = int(ops[0], 0) + 1

def need(p, c):
    n = 0
    vd = {r for r in p.dst if r[0] in 'va'}
    sd = {r for r in p.dst if r[0] in 'sx'}
    if p.kind == 'valu':
        if c.kind == 'mfma' and vd & c.src: n = max(n, 2)
        if p.op in TRANS and c.kind in ('valu',) and c.op not in TRANS and vd & c.src: n = max(n, 1)
        if p.op in TRANS and c.kind == 'mfma' and vd & c.src: n = max(n, 2)
        if c.kind == 'valu' and sd & c.src: n = max(n, 2)
        if c.kind == 'valu' and c.op.startswith(('v_readlane','v_writelane')) and sd & c.src: n = max(n, 4)
        if c.kind == 'vmem' and sd & c.src: n = max(n, 5)
        if c.kind == 'valu' and c.op.startswith(('v_readlane','v_readfirstlane')) and vd & c.src: n = max(n, 1)
        if c.kind == 'valu' and ('dpp' in c.op or 'row_' in c.mods or 'quad_perm' in c.mods or 'wave_' in c.mods or c.op.startswith('v_permlane')) and vd & c.src: n = max(n, 2)
        if ('x','exec') in p.dst and c.kind in ('mfma','valu'): n = max(n, 5)
        if ('op_sel' in p.mods and not p.op.startswith('v_pk_')) or 'dst_sel' in p.mods:
            if c.kind == 'valu' and vd & (c.src | c.dst): n = max(n, 1)
    if p.kind == 'mfma':
        big = 12 if p.passes == 8 else 8
        if c.kind == 'mfma':
            if vd & c.srcAB: n = max(n, big)
            if vd & c.srcC and not (p.dst == c.srcC and p.passes == c.passes): n = max(n, big - 2)
            if vd & c.dst and not (p.dst == c.srcC and p.passes == c.passes): n = max(n, big - 2)
        elif c.kind in ('valu','vmem','ds'):
            if vd & (c.src | c.dst): n = max(n, big)
            if c.kind == 'valu' and p.srcC & c.dst: n = max(n, 7 if p.passes == 8 else 3)
    if p.kind == 'salu' and ('x','m0') in p.dst and c.kind == 'vmem' and getattr(c,'islds',False): n = max(n, 1)
    if p.kind == 'vmem' and getattr(p,'wide_store',False) and p.data & c.dst: n = max(n, 2)
    return n

class Asm:
    def __init__(s):
        s.items = []
        s.nlab = 0
    def __call__(s, txt):
        for line in txt.split('\n'):
            line = line.strip()
            if not line or line.startswith(';'): continue
            if line.endswith(':'): s.items.append(('l', line[:-1]))
            else: s.items.append(('i', Ins(line)))
    def lab(s, n): s.items.append(('l', n))
    def raw(s, t): s.items.append(('r', t))
    def newlab(s, p='L'):
        s.nlab += 1
        return f"{p}_{s.nlab}"
    def pad(s):
        out = []
        hist = []
        for k, it in s.items:
            if k == 'i':
                req = 0; dist = 0
                for p in reversed(hist[-24:]):
                    r = need(p, it) - dist
                    req = max(req, r)
                    dist += p.states
                while req > 0:
                    n = min(req, 16)
                    nop = Ins(f"s_nop {n-1}")
                    out.append(('i', nop)); hist.append(nop); req -= n
                out.append((k, it)); hist.append(it)
                if it.op in ('s_branch','s_endpgm'): hist = []
            else:
                out.append((k, it))
        s.items = out
        idx = {it: i for i, (k, it) in enumerate(out) if k == 'l'}
        for i, (k, it) in enumerate(out):
            if k == 'i' and (it.op == 's_branch' or it.op.startswith('s_cbranch')):
                tgt = it.ops[0]
                if tgt not in idx: continue
                before = []
                j = i
                while j >= 0 and len(before) < 24:
                    kk, x = out[j]
                    if kk == 'i':
                        if j != i and x.op in ('s_branch','s_endpgm'): break
                        before.insert(0, x)
                    j -= 1
                j = idx[tgt]; after = []
                while j < len(out) and len(after) < 24:
                    kk, x = out[j]
                    if kk == 'i':
                        after.append(x)
                        if x.op in ('s_branch','s_endpgm'): break
                    j += 1
                seq = before + after
                for a in range(len(before)):
                    dist = 0
                    for b in range(a+1, len(seq)):
                        if b >= len(before) and need(seq[a], seq[b]) > dist:
                            raise RuntimeError(f"hazard across branch to {tgt}: {seq[a].txt}  ->  {seq[b].txt}")
                        dist += seq[b].states
    def text(s):
        L = []
        for k, it in s.items:
            if k == 'i': L.append('    ' + it.txt)
            elif k == 'l': L.append(it + ':')
            else: L.append(it)
        return '\n'.join(L) + '\n'
```

```python
import sys
sys.path.insert(0, 'gen')
from asmlib import Asm

NAME = 'gated_mix__ssm_conv_s4d__geglu_ffn__prompt'
X_BYTES = 2621440; W_BYTES = 1966080; P_BYTES = 245760
WS_H = 0; WS_WD = 0x600000; WS_UT = 0x800000; WS_YT = 0xB00000; WS_FL = 0xE00000
NW = WS_FL; FH = WS_FL + 0x1000; FU = WS_FL + 0x2000; FW = WS_FL + 0x3000; FY = WS_FL + 0x4000
WS_DBG = WS_FL + 0x8000
WS_KF = WS_FL + 0x40000
WS_SIZE = 0x1000000
SLOT = 40992; XOFF = 0; WGOFF = 16384; WUOFF = 16384 + 12320
CNT = 122976; CONVB = 123136; CONVSZ = 13568
LDS_TOTAL = 163840
SPIN = 0x40000
C_STEP = CNT; C_RED = CNT + 4; C_GA = CNT + 8
PART = 0
YST = 61440
GAOFF = 71680
OMG = 81920

OPT = dict(stamps=False, dump_kf=False, noconv=False, prio=3, auxprio=3)

sWG='s2'; sWAVE='s3'
SX='s[4:7]'; SWS='s[8:11]'
sNON='s12'; sMB='s13'; sNB='s14'; sM2='s15'; sN2='s16'; sROT='s17'
sT0='s18'; sT1='s19'

def srd(a, d, lo, hi, n):
    a(f"s_mov_b32 s{d}, s{lo}\ns_mov_b32 s{d+1}, s{hi}\ns_mov_b32 s{d+2}, {n}\ns_mov_b32 s{d+3}, 0x00020000")

class VM:
    def __init__(s, a): s.a = a; s.n = 0
    def op(s, txt):
        s.a(txt); s.n += 1
        return s.n
    def wait(s, tag):
        k = s.n - tag
        assert k >= 0
        if k < 63: s.a(f"s_waitcnt vmcnt({k})")

def stamp(a, i):
    if OPT['stamps']:
        a(f"s_memtime s[{80+2*i}:{81+2*i}]")

def stamps_out(a):
    if not OPT['stamps']: return
    a("s_waitcnt lgkmcnt(0)")
    for i in range(8):
        a(f"v_mov_b32 v{2+i}, s{80+2*i}")
    a(f"""s_lshl_b32 s18, {sWG}, 9
    s_lshl_b32 s19, {sWAVE}, 6
    s_add_u32 s18, s18, s19
    s_add_u32 s18, s18, {WS_DBG}
    v_mov_b32 v10, 0
    s_mov_b64 exec, 1
    buffer_store_dwordx4 v[2:5], v10, {SWS}, s18 offen
    buffer_store_dwordx4 v[6:9], v10, {SWS}, s18 offen offset:16
    s_mov_b64 exec, -1""")

def lds_poll(a, vaddr, vtmp, target, off=0, mid=None, scnt='s30', stmp='s31'):
    L = a.newlab('Lp'); Ld = a.newlab('Lpd')
    a(f"ds_read_b32 {vtmp}, {vaddr} offset:{off}")
    if mid: mid()
    a(f"s_mov_b32 {scnt}, 0")
    a.lab(L)
    a(f"""s_waitcnt lgkmcnt(0)
    v_readfirstlane_b32 {stmp}, {vtmp}
    s_cmp_ge_u32 {stmp}, {target}
    s_cbranch_scc1 {Ld}
    ds_read_b32 {vtmp}, {vaddr} offset:{off}
    s_add_u32 {scnt}, {scnt}, 1
    s_cmp_lt_u32 {scnt}, {SPIN}
    s_cbranch_scc1 {L}""")
    a.lab(Ld)

def flag_poll(a, vaddr, vtmp, soff, n=1, scnt='s30', sleep=1):
    L = a.newlab('Lf'); Ld = a.newlab('Lfd')
    t = int(vtmp[1:])
    a(f"s_mov_b32 {scnt}, 0")
    a.lab(L)
    sfx = {1:'dword',2:'dwordx2',4:'dwordx4'}[n]
    dst = vtmp if n == 1 else f"v[{t}:{t+n-1}]"
    a(f"buffer_load_{sfx} {dst}, {vaddr}, {SWS}, {soff} offen sc1\ns_waitcnt vmcnt(0)")
    if n > 1:
        for i in range(n): a(f"v_xor_b32 v{t+i}, {sNON}, v{t+i}")
        for i in range(1, n): a(f"v_or_b32 v{t}, v{t}, v{t+i}")
        a(f"v_cmp_ne_u32 vcc, 0, v{t}")
    else:
        a(f"v_cmp_ne_u32 vcc, {sNON}, v{t}")
    a(f"s_cbranch_vccz {Ld}")
    if sleep: a(f"s_sleep {sleep}")
    a(f"""s_add_u32 {scnt}, {scnt}, 1
    s_cmp_lt_u32 {scnt}, {SPIN//16}
    s_cbranch_scc1 {L}""")
    a.lab(Ld)

def flag_store(a, soff, v0='v240', v1='v241'):
    a(f"""v_mov_b32 {v0}, {sNON}
    v_mov_b32 {v1}, 0
    s_mov_b64 exec, 1
    buffer_store_dword {v0}, {v1}, {SWS}, {soff} offen sc1
    s_mov_b64 exec, -1""")

def r(b, n): return f"v[{b}:{b+n-1}]"

def prologue(a):
    a(f"""s_cmp_ge_u32 {sWG}, 256
    s_cbranch_scc1 Lexit
    s_load_dwordx2 s[20:21], s[0:1], 0
    s_load_dwordx4 s[24:27], s[0:1], 64
    s_load_dwordx2 s[22:23], s[0:1], 112""")
    if OPT['stamps']:
        a("s_memtime s[80:81]")
    a(f"""v_lshrrev_b32 v2, 6, v0
    v_and_b32 v1, 63, v0
    v_readfirstlane_b32 {sWAVE}, v2
    s_and_b32 s28, {sWG}, 7
    s_lshr_b32 s29, {sWG}, 3
    s_lshr_b32 s30, s28, 2
    s_lshl_b32 s30, s30, 3
    s_lshr_b32 s31, s29, 2
    s_add_u32 {sMB}, s30, s31
    s_and_b32 s30, s28, 3
    s_and_b32 s31, s29, 3
    s_lshl_b32 {sNB}, s30, 2
    s_add_u32 {sNB}, {sNB}, s31
    s_and_b32 s28, s30, 1
    s_lshl_b32 {sM2}, {sMB}, 1
    s_add_u32 {sM2}, {sM2}, s28
    s_lshr_b32 s28, s30, 1
    s_lshl_b32 {sN2}, s28, 2
    s_add_u32 {sN2}, {sN2}, s31
    s_add_u32 {sROT}, {sMB}, {sNB}
    s_mul_i32 s28, {sROT}, 0x199a
    s_lshr_b32 s28, s28, 16
    s_mul_i32 s28, s28, 10
    s_sub_u32 {sROT}, {sROT}, s28
    s_cmp_ge_u32 {sWAVE}, 4
    s_cbranch_scc1 Lnot_gemm""")

def common_srds(a):
    srd(a, 4, 20, 21, X_BYTES)
    srd(a, 8, 22, 23, WS_SIZE)

def nonce_load(a):
    a(f"s_add_u32 s28, s22, {NW}\ns_addc_u32 s29, s23, 0\ns_load_dword {sNON}, s[28:29], 0")
def nonce_fin(a):
    a(f"s_waitcnt lgkmcnt(0)\ns_mul_i32 {sNON}, {sNON}, 0x9E3779B1\ns_add_u32 {sNON}, {sNON}, 0x7F4A7C15")

ACC1 = 128
PA, PB = 224, 236
QA, QB = 244, 116
vXD = [2,3,4,5]; vWD = [6,7,8]; vB = [10,11,12,13]; vA = 14; vONE = 9; vCNT = 15; vPOLL = 124; vL16 = 0; vHST = 126
SWG='s[32:35]'; SWU='s[36:39]'
sKX='s40'; sKW='s41'; sKN='s42'; sMX='s43'; sSLOTI='s44'; sTGT='s45'; sJ='s46'; sRD='s47'; sMH='s48'; sFH='s49'
WDR = 16; HR = 116; ACC2 = 176

def g1_dma(a, vm):
    ops = []
    def m0(off): return lambda: a(f"s_add_u32 m0, {sMX}, {off}")
    def ld(v, srd_, so, q): return lambda: vm.op(f"buffer_load_dwordx4 v{v}, {srd_}, {so} offen offset:{1024*q} lds")
    ops.append(lambda: a(f"s_mov_b32 m0, {sMX}"))
    for q in range(4): ops.append(ld(vXD[q], SX, sKX, q))
    ops.append(lambda: a(f"s_add_u32 m0, s50, {WGOFF}"))
    for q in range(3): ops.append(ld(vWD[q], SWG, sKW, q))
    ops.append(lambda: a(f"s_add_u32 m0, s50, {WUOFF}"))
    for q in range(3): ops.append(ld(vWD[q], SWU, sKW, q))
    def adv():
        a(f"""s_add_u32 {sKN}, {sKN}, 1
        s_cmp_eq_u32 {sKN}, 10
        s_cselect_b32 {sKN}, 0, {sKN}
        s_lshl_b32 {sKX}, {sKN}, 7
        s_mul_i32 {sKW}, {sKN}, {64*3072}
        s_add_u32 {sSLOTI}, {sSLOTI}, 1
        s_cmp_eq_u32 {sSLOTI}, 3
        s_cselect_b32 s51, {-2*SLOT}, s53
        s_cselect_b32 {sSLOTI}, 0, {sSLOTI}
        s_add_u32 {sMX}, {sMX}, s51
        s_add_u32 s50, s50, s51""")
    ops.append(adv)
    return ops

def g1_reads(a, sub, A, B):
    L = []
    for mi in range(2):
        L.append(f"ds_read_b128 {r(B+4*mi,4)}, v{vB[sub]} offset:{4096*mi}")
    for g in range(3):
        for h in range(2):
            L.append(f"ds_read_b64_tr_b16 {r(A+4*g+2*h,2)}, v{vA} offset:{sub*3072+h*768+g*32}")
    return [L[0], L[2], L[3], L[1], L[4], L[5], L[6], L[7]]

def g1_mfmas(A, B):
    L = []
    for g in range(3):
        for mi in range(2):
            t = ACC1 + 16*(mi*3+g)
            L.append(f"v_mfma_f32_32x32x16_bf16 {r(t,16)}, {r(A+4*g,4)}, {r(B+4*mi,4)}, {r(t,16)}")
    return L

def g1_step(a, vm, extra, vmwait, last=False):
    mq = g1_mfmas(QA, QB); mp = g1_mfmas(PA, PB)
    a("s_waitcnt lgkmcnt(0)")
    a(mq[0]); a(mq[1])
    a(f"s_waitcnt vmcnt({vmwait})")
    a(f"s_mov_b64 exec, 1\nds_add_u32 v{vCNT}, v{vONE}\ns_mov_b64 exec, -1")
    a(f"""s_add_u32 {sRD}, {sRD}, 1
    s_cmp_eq_u32 {sRD}, 3
    s_cselect_b32 s52, {-2*SLOT}, s53
    s_cselect_b32 {sRD}, 0, {sRD}
    s_add_u32 {sTGT}, {sTGT}, 5""")
    def mid():
        a(mq[2])
        for v in vB + [vA]: a(f"v_add_u32 v{v}, s52, v{v}")
        a(mq[3])
    lds_poll(a, f"v{vCNT}", f"v{vPOLL}", sTGT, mid=mid)
    ex = list(extra)
    def pop(n):
        for _ in range(n):
            if ex: ex.pop(0)()
    for x in g1_reads(a, 0, PA, PB): a(x)
    a(mq[4]); pop(3); a(mq[5])
    for sub in range(3):
        cur = mp if sub % 2 == 0 else mq
        nA, nB = (QA, QB) if sub % 2 == 0 else (PA, PB)
        rd = g1_reads(a, sub+1, nA, nB)
        a(rd[0]); a(rd[1]); a(rd[2]); a(rd[3])
        a("s_waitcnt lgkmcnt(4)")
        a(cur[0]); a(rd[4]); a(rd[5]); a(cur[1]); a(rd[6]); a(rd[7])
        for i in range(2, 6):
            a(cur[i]); pop(2)
    pop(100)

def gemm_waves(a):
    vm = VM(a)
    a(f"s_setprio {OPT['prio']}")
    a(f"""s_lshr_b32 {sMH}, {sWAVE}, 1
    s_and_b32 {sFH}, {sWAVE}, 1
    s_lshl_b32 s28, {sMB}, 7
    s_lshl_b32 s29, {sWAVE}, 5
    s_add_u32 s28, s28, s29
    s_mul_i32 s28, s28, 1280
    v_lshrrev_b32 v16, 3, v1
    v_mul_u32_u24 v16, 1280, v16
    v_add_u32 v16, s28, v16
    v_lshrrev_b32 v17, 4, v1
    v_and_b32 v18, 7, v1
    v_xor_b32 v19, v17, v18
    v_xor_b32 v20, 4, v19
    v_lshl_add_u32 v{vXD[0]}, v19, 4, v16
    v_lshl_add_u32 v{vXD[1]}, v20, 4, v16
    v_add_u32 v{vXD[2]}, {16*1280-2048}, v{vXD[0]}
    v_add_u32 v{vXD[1]}, {8*1280-1024}, v{vXD[1]}
    v_add_u32 v{vXD[3]}, {16*1280-2048}, v{vXD[1]}
    s_mul_i32 s28, {sWAVE}, 192
    s_mul_i32 s29, {sNB}, 192""")
    for q in range(3):
        a(f"""v_add_u32 v16, s28, v1
        v_add_u32 v16, {64*q}, v16
        v_mul_u32_u24 v17, 0x5556, v16
        v_lshrrev_b32 v17, 18, v17
        v_mul_u32_u24 v18, 12, v17
        v_sub_u32 v18, v16, v18
        v_mul_u32_u24 v17, 3072, v17
        v_lshl_add_u32 v17, v18, 4, v17
        v_add_u32 v17, s29, v17
        v_subrev_u32 v{vWD[q]}, {1024*q}, v17""")
    a(f"""s_mov_b32 {sKN}, {sROT}
    s_lshl_b32 {sKX}, {sKN}, 7
    s_mul_i32 {sKW}, {sKN}, {64*3072}
    s_lshl_b32 {sMX}, {sWAVE}, 12
    s_mul_i32 s50, {sWAVE}, 3072
    s_mov_b32 {sSLOTI}, 0
    s_mov_b32 s53, {SLOT}
    s_waitcnt lgkmcnt(0)""")
    srd(a, 4, 20, 21, X_BYTES)
    srd(a, 32, 24, 25, W_BYTES)
    srd(a, 36, 26, 27, W_BYTES)
    for _ in range(2):
        for f in g1_dma(a, vm): f()
    srd(a, 8, 22, 23, WS_SIZE)
    nonce_load(a)
    a("s_load_dwordx2 s[54:55], s[0:1], 96")
    a(f"""v_and_b32 v16, 31, v1
    s_lshl_b32 s28, {sMH}, 13
    s_add_u32 s28, s28, {2*SLOT}
    v_lshlrev_b32 v17, 7, v16
    v_add_u32 v17, s28, v17
    v_bfe_u32 v18, v16, 1, 3
    v_lshrrev_b32 v19, 5, v1
    v_xor_b32 v18, v18, v19""")
    for s in range(4):
        a(f"v_xor_b32 v19, {2*s}, v18\nv_lshl_add_u32 v{vB[s]}, v19, 4, v17")
    a(f"""v_lshrrev_b32 v16, 5, v1
    v_lshlrev_b32 v16, 3, v16
    v_bfe_u32 v17, v1, 2, 2
    v_add_u32 v16, v16, v17
    v_mul_u32_u24 v16, 192, v16
    v_bfe_u32 v17, v1, 4, 1
    v_mul_u32_u24 v17, 12320, v17
    v_add_u32 v16, v16, v17
    v_and_b32 v17, 3, v1
    v_lshl_add_u32 v16, v17, 3, v16
    s_mul_i32 s28, {sFH}, 96
    s_add_u32 s28, s28, {WGOFF + 2*SLOT}
    v_add_u32 v{vA}, s28, v16
    s_mov_b32 {sRD}, 2
    s_mov_b32 {sTGT}, 0
    v_mov_b32 v{vONE}, 1
    v_mov_b32 v{vCNT}, {C_STEP}
    v_lshlrev_b32 v{vL16}, 4, v1
    v_and_b32 v16, 15, v1
    v_lshlrev_b32 v16, 4, v16
    v_bfe_u32 v17, v1, 4, 1
    v_lshl_add_u32 v16, v17, 10, v16
    v_lshrrev_b32 v17, 5, v1
    v_lshl_add_u32 v{vHST}, v17, 8, v16""")
    for i in range(96): a(f"v_mov_b32 v{ACC1+i}, 0")
    for i in list(range(QA, QA+12)) + list(range(QB, QB+8)): a(f"v_mov_b32 v{i}, 0")
    nonce_fin(a)
    a("s_barrier")
    stamp(a, 1)
    a(f"s_mov_b32 {sJ}, 0")
    a.lab("Lg1loop")
    g1_step(a, vm, g1_dma(a, vm), 10)
    a(f"s_add_u32 {sJ}, {sJ}, 1\ns_cmp_lt_u32 {sJ}, 8\ns_cbranch_scc1 Lg1loop")
    a(f"""s_mul_i32 s56, {sN2}, 245760
    s_mul_i32 s28, {sWAVE}, 61440
    s_add_u32 s56, s56, s28
    s_add_u32 s56, s56, {WS_WD}""")
    wdtag = {}
    def wd_load(ks, dt):
        def f():
            reg = WDR + ((ks % 5)*5 + dt)*4
            off = ks*5120 + dt*1024
            a(f"s_add_u32 s57, s56, {off & ~4095}")
            wdtag[(ks,dt)] = vm.op(f"buffer_load_dwordx4 {r(reg,4)}, v{vL16}, {SWS}, s57 offen offset:{off & 4095} sc1")
        return f
    pre = [wd_load(ks, dt) for ks in range(5) for dt in range(5)]
    g1_step(a, vm, pre[:12], 10)
    g1_step(a, vm, pre[12:], 12)
    stamp(a, 2)
    a("s_waitcnt lgkmcnt(0)")
    a(f"s_mov_b64 exec, 1\nds_add_u32 v{vCNT}, v{vONE}\ns_mov_b64 exec, -1")
    for x in g1_mfmas(QA, QB): a(x)
    K1 = -2*0.7978845608028654*1.4426950408889634
    K2 = K1*0.044715
    import struct
    fb = lambda x: struct.unpack('<I', struct.pack('<f', x))[0]
    a(f"s_mov_b32 s58, {fb(K1):#x}\ns_mov_b32 s59, s58\ns_mov_b32 s60, {fb(K2):#x}\ns_mov_b32 s61, s60\ns_mov_b32 s62, 1.0\ns_mov_b32 s63, 1.0")
    a(f"""s_lshl_b32 s28, {sMB}, 1
    s_add_u32 s28, s28, {sMH}
    s_mul_i32 s64, s28, 196608
    s_mul_i32 s29, {sNB}, 6
    s_mul_i32 s65, {sFH}, 3
    s_add_u32 s65, s65, s29
    v_mov_b32 v232, s58
    v_mov_b32 v233, s58""")
    T = 224
    last = None
    for g in range(3):
        a(f"""s_add_u32 s28, s65, {g}
        s_lshr_b32 s29, s28, 1
        s_lshl_b32 s29, s29, 12
        s_and_b32 s28, s28, 1
        s_lshl_b32 s28, s28, 9
        s_add_u32 s28, s28, s29
        s_add_u32 s66, s28, s64""")
        for mi in range(2):
            t = ACC1 + 16*(mi*3+g)
            o = 244 + 4*((g*2+mi) % 2)
            for p in range(4): a(f"v_pk_mul_f32 {r(T+2*p,2)}, {r(t+2*p,2)}, {r(t+2*p,2)}")
            for p in range(4): a(f"v_pk_fma_f32 {r(T+2*p,2)}, {r(T+2*p,2)}, s[60:61], v[232:233]")
            for p in range(4): a(f"v_pk_mul_f32 {r(T+2*p,2)}, {r(T+2*p,2)}, {r(t+2*p,2)}")
            for p in range(8): a(f"v_exp_f32 v{T+p}, v{T+p}")
            for p in range(4): a(f"v_pk_mul_f32 {r(t+2*p,2)}, {r(t+2*p,2)}, {r(t+8+2*p,2)}")
            for p in range(4): a(f"v_pk_add_f32 {r(T+2*p,2)}, {r(T+2*p,2)}, s[62:63]")
            for p in range(8): a(f"v_rcp_f32 v{T+p}, v{T+p}")
            for p in range(4): a(f"v_pk_mul_f32 {r(t+2*p,2)}, {r(t+2*p,2)}, {r(T+2*p,2)}")
            for p in range(4): a(f"v_cvt_pk_bf16_f32 v{o+p}, v{t+2*p}, v{t+2*p+1}")
            last = vm.op(f"buffer_store_dwordx4 {r(o,4)}, v{vHST}, {SWS}, s66 offen offset:{2048*mi} sc1")
    stamp(a, 3)
    vm.wait(last)
    a(f"""s_lshl_b32 s28, {sMB}, 1
    s_add_u32 s28, s28, {sMH}
    s_lshl_b32 s28, s28, 7
    s_lshl_b32 s29, {sNB}, 3
    s_add_u32 s28, s28, s29
    s_lshl_b32 s29, {sFH}, 2
    s_add_u32 s28, s28, s29
    s_add_u32 s28, s28, {FH}""")
    flag_store(a, 's28')
    stamp(a, 4)
    lds_poll(a, f"v{vCNT}", f"v{vPOLL}", 55)
    a(f"""s_lshl_b32 s28, {sM2}, 7
    s_lshl_b32 s29, {sWAVE}, 5
    s_add_u32 s28, s28, s29
    s_add_u32 s28, s28, {FH}
    v_and_b32 v242, 7, v1
    v_lshlrev_b32 v242, 2, v242
    s_mul_i32 s67, {sM2}, 196608
    s_mul_i32 s29, {sWAVE}, 49152
    s_add_u32 s67, s67, s29""")
    flag_poll(a, 'v242', 'v243', 's28', sleep=0)
    vm.n += 1; base = vm.n
    stamp(a, 5)
    htag = {}
    def h_load(ks, mt):
        reg = HR + ((ks % 3)*4 + mt)*4
        if mt == 0: a(f"s_add_u32 s68, s67, {ks*4096}")
        htag[(ks,mt)] = vm.op(f"buffer_load_dwordx4 {r(reg,4)}, v{vL16}, {SWS}, s68 offen offset:{mt*1024} sc1")
    for ks in range(3):
        for mt in range(4): h_load(ks, mt)
    for ks in range(12):
        for mt in range(4):
            tg = htag[(ks,mt)]
            if mt == 0 and ks >= 5: tg = max(tg, wdtag[(ks,4)])
            vm.wait(tg)
            for dt in range(5):
                ac = ACC2 + (mt*5+dt)*4
                c = '0' if ks == 0 else r(ac,4)
                a(f"v_mfma_f32_16x16x32_bf16 {r(ac,4)}, {r(WDR+((ks%5)*5+dt)*4,4)}, {r(HR+((ks%3)*4+mt)*4,4)}, {c}")
                if mt == 0 and ks >= 1 and ks+4 < 12: wd_load(ks+4, dt)()
            if ks+3 < 12: h_load(ks+3, mt)
    stamp(a, 6)
    a(f"s_mul_i32 s28, {sWAVE}, 15360\nv_add_u32 v2, s28, v{vL16}")
    Lj = [a.newlab('Lred') for _ in range(4)]; Lr = a.newlab('Lredj')
    for q in range(1,4): a(f"s_cmp_eq_u32 {sWAVE}, {q}\ns_cbranch_scc1 {Lj[q]}")
    for q in range(4):
        a.lab(Lj[q])
        if q: a("s_nop 7")
        for j in range(3):
            mt = (q+1+j) % 4
            for dt in range(5):
                a(f"ds_write_b128 v2, {r(ACC2+(mt*5+dt)*4,4)} offset:{(j*5+dt)*1024}")
        for dt in range(5):
            for i in range(0,4,2): a(f"v_pk_mul_f32 {r(16+dt*4+i,2)}, {r(ACC2+(q*5+dt)*4+i,2)}, s[62:63]")
        if q < 3: a(f"s_branch {Lr}")
    a.lab(Lr)
    a(f"s_waitcnt lgkmcnt(0)\ns_mov_b64 exec, 1\nds_add_u32 v{vCNT}, v{vONE} offset:4\ns_mov_b64 exec, -1")
    for i in range(3):
        a(f"""s_add_u32 s28, {sWAVE}, {1+i}
        s_and_b32 s28, s28, 3
        s_mul_i32 s28, s28, 15360
        s_add_u32 s28, s28, {(2-i)*5120}
        v_add_u32 v{3+i}, s28, v{vL16}""")
    srd(a, 68, 54, 55, X_BYTES)
    a(f"""v_and_b32 v6, 15, v1
    s_lshl_b32 s28, {sWAVE}, 4
    v_add_u32 v6, s28, v6
    v_lshlrev_b32 v7, 2, v6
    v_add_u32 v7, {OMG}, v7
    v_mul_u32_u24 v6, 1280, v6
    v_lshrrev_b32 v8, 4, v1
    v_lshl_add_u32 v10, v8, 3, v6
    v_lshl_add_u32 v6, v8, 4, v6
    s_mul_i32 s72, {sM2}, {64*1280}
    s_mul_i32 s28, {sN2}, 160
    s_add_u32 s72, s72, s28
    s_mul_i32 s28, {sWAVE}, 2560
    s_add_u32 s28, s28, {GAOFF}
    v_add_u32 v11, s28, v{vL16}
    v_lshlrev_b32 v12, 3, v1
    v_add_u32 v12, s28, v12""")
    lds_poll(a, f"v{vCNT}", f"v{vPOLL}", 4, off=4)
    for i in range(3):
        for dt in range(5): a(f"ds_read_b128 {r(40+(i*5+dt)*4,4)}, v{3+i} offset:{dt*1024}")
    lds_poll(a, f"v{vCNT}", f"v{vPOLL}", 1, off=8)
    a(f"""ds_read_b32 v13, v7
    ds_read_b128 v[100:103], v11
    ds_read_b128 v[104:107], v11 offset:1024
    ds_read_b64 v[108:109], v12 offset:2048""")
    for i in range(3):
        for k in range(0,20,2): a(f"v_pk_add_f32 {r(16+k,2)}, {r(16+k,2)}, {r(40+i*20+k,2)}")
    a("s_waitcnt lgkmcnt(0)")
    for k in range(10):
        a(f"""v_lshlrev_b32 v110, 16, v{100+k}
        v_and_b32 v111, 0xffff0000, v{100+k}
        v_fma_f32 v110, v13, v{16+2*k}, v110
        v_fma_f32 v111, v13, v{17+2*k}, v111
        v_cvt_pk_bf16_f32 v{40+k}, v110, v111""")
    a(f"""buffer_store_dwordx4 v[40:43], v6, s[68:71], s72 offen
    buffer_store_dwordx4 v[44:47], v6, s[68:71], s72 offen offset:64
    buffer_store_dwordx2 v[48:49], v10, s[68:71], s72 offen offset:128""")
    stamp(a, 7)
    stamps_out(a)
    a("s_endpgm")

def aux_wave(a):
    a(f"s_setprio {OPT['auxprio']}")
    a("s_load_dwordx2 s[32:33], s[0:1], 88\ns_load_dwordx2 s[34:35], s[0:1], 48")
    a(f"v_mov_b32 v2, {CNT}\nv_mov_b32 v3, 0\nv_lshl_add_u32 v2, v1, 2, v2\ns_mov_b64 exec, 0xffff\nds_write_b32 v2, v3\ns_mov_b64 exec, -1")
    a("s_waitcnt lgkmcnt(0)")
    common_srds(a)
    nonce_load(a)
    srd(a, 36, 32, 33, 1280)
    srd(a, 40, 34, 35, 1280)
    a(f"v_lshrrev_b32 v2, 4, v1\nv_lshlrev_b32 v2, 4, v2\ns_mov_b32 s44, {sROT}")
    for j in range(10):
        a(f"""s_lshl_b32 s45, s44, 7
        buffer_load_dwordx4 {r(128+8*j,4)}, v2, s[36:39], s45 offen
        buffer_load_dwordx4 {r(132+8*j,4)}, v2, s[36:39], s45 offen offset:64
        s_add_u32 s44, s44, 1
        s_cmp_eq_u32 s44, 10
        s_cselect_b32 s44, 0, s44""")
    a(f"""v_and_b32 v6, 15, v1
    s_and_b32 s28, {sM2}, 1
    s_lshl_b32 s28, s28, 13
    v_lshlrev_b32 v7, 7, v6
    v_add_u32 v7, s28, v7
    v_lshrrev_b32 v6, 1, v6
    v_lshrrev_b32 v8, 4, v1
    v_xor_b32 v6, v6, v8
    v_lshl_add_u32 v4, v6, 4, v7
    v_xor_b32 v5, 64, v4
    v_mov_b32 v9, 1
    v_mov_b32 v15, {C_STEP}
    v_lshrrev_b32 v6, 4, v1
    v_bfe_u32 v7, v1, 2, 2
    v_lshl_add_u32 v8, v6, 3, v7      ; row = 8G + r
    v_and_b32 v10, 3, v1""")
    for half in range(2):
        a(f"""v_add_u32 v11, {4*half}, v8
        v_bfe_u32 v12, v11, 1, 3
        v_lshrrev_b32 v13, 1, v10
        v_xor_b32 v12, v12, v13
        v_lshlrev_b32 v12, 4, v12
        v_lshl_add_u32 v12, v11, 7, v12
        v_and_b32 v13, 1, v10
        v_lshl_add_u32 v{16+half}, v13, 3, v12""")
        for cb in range(1,4): a(f"v_xor_b32 v{16+2*cb+half}, {32*cb}, v{16+half}")
    a(f"""v_and_b32 v10, 15, v1
    v_lshlrev_b32 v10, 12, v10
    v_lshl_add_u32 v24, v6, 4, v10
    s_lshl_b32 s46, {sROT}, 18
    s_lshl_b32 s28, {sMB}, 8
    s_add_u32 s46, s46, s28
    s_add_u32 s46, s46, {WS_UT}""")
    nonce_fin(a)
    a("s_barrier")
    ACC = 208
    for j in range(10):
        so = (j % 3)*SLOT
        if j == 8:
            a(f"""s_lshl_b32 s28, {sN2}, 7
            s_add_u32 s28, s28, {FW}
            v_and_b32 v26, 15, v1
            v_lshlrev_b32 v26, 2, v26""")
            flag_poll(a, 'v26', 'v27', 's28')
        a("s_mov_b64 exec, 1\nds_add_u32 v15, v9\ns_mov_b64 exec, -1")
        lds_poll(a, 'v15', 'v25', 5*(j+1))
        if so >= 65536 - 8192*2:
            a(f"v_add_u32 v26, {so}, v4\nv_add_u32 v27, {so}, v5")
            va, vb, o = 'v26', 'v27', 0
        else: va, vb, o = 'v4', 'v5', so
        for mt in range(4):
            a(f"ds_read_b128 {r(32+8*mt,4)}, {va} offset:{o+mt*2048}\nds_read_b128 {r(36+8*mt,4)}, {vb} offset:{o+mt*2048}")
        if j == 0:
            a(f"s_cmp_ge_u32 {sNB}, 10\ns_cbranch_scc1 Lnout0")
            for cb in range(4):
                for tb in range(4):
                    for half in range(2):
                        a(f"ds_read_b64_tr_b16 {r(64+(cb*4+tb)*4+2*half,2)}, v{16+2*cb+half} offset:{tb*4096}")
            a("s_waitcnt lgkmcnt(0)")
            for cb in range(4):
                a(f"s_add_u32 s47, s46, {cb*16*4096}")
                for tb in range(4):
                    a(f"buffer_store_dwordx4 {r(64+(cb*4+tb)*4,4)}, v24, {SWS}, s47 offen offset:{tb*64} sc1")
            a.lab("Lnout0")
            a("s_waitcnt vmcnt(16)")
            a(f"s_cmp_lt_u32 {sNB}, 10\ns_cbranch_scc1 Lnout1\ns_waitcnt vmcnt(0)")
            a.lab("Lnout1")
        a("s_waitcnt lgkmcnt(0)")
        for mt in range(4):
            for k in range(2):
                c = '0' if (j == 0 and k == 0) else r(ACC+4*mt,4)
                a(f"v_mfma_f32_16x16x32_bf16 {r(ACC+4*mt,4)}, {r(128+8*j+4*k,4)}, {r(32+8*mt+4*k,4)}, {c}")
        if j == 1:
            a(f"s_cmp_ge_u32 {sNB}, 10\ns_cbranch_scc1 Lnout2\ns_waitcnt vmcnt(0)")
            a(f"""s_lshl_b32 s28, {sROT}, 7
            s_lshl_b32 s29, {sMB}, 2
            s_add_u32 s28, s28, s29
            s_add_u32 s28, s28, {FU}""")
            flag_store(a, 's28', 'v26', 'v27')
            a.lab("Lnout2")
    a("s_mov_b64 exec, 1\nds_add_u32 v15, v9\ns_mov_b64 exec, -1")
    stamp(a, 1)
    a("s_mov_b32 s28, 0xbfb8aa3b")
    for mt in range(4): a(f"v_mul_f32 v{28+mt}, s28, v{ACC+4*mt}")
    for mt in range(4): a(f"v_exp_f32 v{28+mt}, v{28+mt}")
    for mt in range(4): a(f"v_add_f32 v{28+mt}, 1.0, v{28+mt}")
    for mt in range(4): a(f"v_rcp_f32 v{28+mt}, v{28+mt}")
    a(f"""v_and_b32 v6, 15, v1
    v_mul_u32_u24 v6, 1280, v6
    v_lshrrev_b32 v8, 4, v1
    v_lshl_add_u32 v10, v8, 3, v6
    v_lshl_add_u32 v6, v8, 4, v6
    v_lshlrev_b32 v11, 4, v8
    v_lshlrev_b32 v12, 3, v8
    s_mul_i32 s48, {sM2}, {64*1280}
    s_mul_i32 s49, {sN2}, 160
    s_add_u32 s48, s48, s49""")
    XR = 64
    for mt in range(4):
        a(f"""buffer_load_dwordx4 {r(XR+mt*10,4)}, v6, {SX}, s48 offen
        buffer_load_dwordx4 {r(XR+mt*10+4,4)}, v6, {SX}, s48 offen offset:64
        buffer_load_dwordx2 {r(XR+mt*10+8,2)}, v10, {SX}, s48 offen offset:128
        s_add_u32 s48, s48, {16*1280}""")
    DR = 104
    a(f"""buffer_load_dwordx4 {r(DR,4)}, v11, s[40:43], s49 offen
    buffer_load_dwordx4 {r(DR+4,4)}, v11, s[40:43], s49 offen offset:64
    buffer_load_dwordx2 {r(DR+8,2)}, v12, s[40:43], s49 offen offset:128""")
    lds_poll(a, 'v15', 'v25', 55)
    a(f"v_and_b32 v13, 15, v1\nv_lshlrev_b32 v13, 2, v13\nv_add_u32 v13, {OMG}, v13")
    for mt in range(4):
        a(f"v_sub_f32 v14, 1.0, v{28+mt}\nds_write_b32 v13, v14 offset:{mt*64}")
    a("s_waitcnt vmcnt(0)")
    for k in range(10):
        a(f"v_lshlrev_b32 v{128+2*k}, 16, v{DR+k}\nv_and_b32 v{129+2*k}, 0xffff0000, v{DR+k}")
    a(f"""s_mul_i32 s28, {sN2}, 320
    s_add_u32 s28, s28, {FY}
    v_min_u32 v26, 39, v1
    v_lshlrev_b32 v26, 3, v26""")
    flag_poll(a, 'v26', 'v32', 's28', n=2)
    stamp(a, 2)
    a(f"""v_lshrrev_b32 v26, 3, v1
    v_lshlrev_b32 v26, 12, v26
    v_and_b32 v27, 7, v1
    v_lshl_add_u32 v26, v27, 4, v26
    s_mul_i32 s28, {sN2}, {80*4096}
    s_lshl_b32 s29, {sM2}, 7
    s_add_u32 s28, s28, s29
    s_add_u32 s28, s28, {WS_YT}""")
    for i in range(10):
        a(f"s_mov_b32 m0, {YST+1024*i}\nbuffer_load_dwordx4 v26, {SWS}, s28 offen sc1 lds\ns_add_u32 s28, s28, {8*4096}")
    a(f"""v_lshrrev_b32 v6, 4, v1
    v_bfe_u32 v7, v1, 2, 2
    v_and_b32 v8, 3, v1
    v_lshl_add_u32 v10, v6, 3, v7
    v_lshlrev_b32 v10, 7, v10
    v_lshl_add_u32 v10, v8, 3, v10
    v_add_u32 v10, {YST}, v10
    v_lshl_add_u32 v11, v6, 2, v7
    v_lshlrev_b32 v11, 7, v11
    v_lshl_add_u32 v11, v8, 3, v11
    v_add_u32 v11, {YST + 64*128}, v11
    v_lshlrev_b32 v12, 4, v1
    v_add_u32 v12, {GAOFF}, v12
    v_lshlrev_b32 v13, 3, v1
    v_add_u32 v13, {GAOFF}, v13
    s_waitcnt vmcnt(0)""")
    YR = 160
    for mt in range(4):
        for dt in range(4):
            a(f"ds_read_b64_tr_b16 {r(YR+mt*10+2*dt,2)}, v10 offset:{(32*(dt>>1)+4*(dt&1))*128+32*mt}")
        a(f"ds_read_b64_tr_b16 {r(YR+mt*10+8,2)}, v11 offset:{32*mt}")
    for mt in range(4):
        if mt == 0: a("s_waitcnt lgkmcnt(15)")
        elif mt == 3: a("s_waitcnt lgkmcnt(6)")
        else: a(f"s_waitcnt lgkmcnt({15-5*mt+3*mt})")
        for k in range(10):
            x = XR+mt*10+k; y = YR+mt*10+k
            a(f"""v_lshlrev_b32 v32, 16, v{x}
            v_and_b32 v33, 0xffff0000, v{x}
            v_lshlrev_b32 v34, 16, v{y}
            v_and_b32 v35, 0xffff0000, v{y}
            v_pk_fma_f32 v[32:33], v[32:33], {r(128+2*k,2)}, v[34:35]
            v_mul_f32 v32, v{28+mt}, v32
            v_mul_f32 v33, v{28+mt}, v33
            v_cvt_pk_bf16_f32 v{x}, v32, v33""")
        a(f"""ds_write_b128 v12, {r(XR+mt*10,4)} offset:{mt*2560}
        ds_write_b128 v12, {r(XR+mt*10+4,4)} offset:{mt*2560+1024}
        ds_write_b64 v13, {r(XR+mt*10+8,2)} offset:{mt*2560+2048}""")
    a("s_waitcnt lgkmcnt(0)\ns_mov_b64 exec, 1\nds_add_u32 v15, v9 offset:8\ns_mov_b64 exec, -1")
    stamp(a, 3)
    a(f"s_cmp_lg_u32 {sWG}, 0\ns_cbranch_scc1 Lauxend")
    a(f"v_lshlrev_b32 v26, 4, v1")
    for i in range(4):
        a(f"s_mov_b32 s28, {FH + 1024*i}")
        flag_poll(a, 'v26', 'v32', 's28', n=4)
    a(f"s_mov_b32 s28, {NW}")
    flag_store(a, 's28', 'v26', 'v27')
    a.lab("Lauxend")
    stamps_out(a)
    a("s_endpgm")

def wd_wave(a):
    a("s_load_dwordx2 s[32:33], s[0:1], 80\ns_waitcnt lgkmcnt(0)")
    srd(a, 8, 22, 23, WS_SIZE)
    nonce_load(a)
    srd(a, 36, 32, 33, W_BYTES)
    a(f"""s_lshr_b32 s40, {sWG}, 1
    s_lshr_b32 s41, s40, 4
    s_and_b32 s42, s40, 15
    s_mul_i32 s43, s42, {96*1280}
    s_mul_i32 s28, s41, 160
    s_add_u32 s43, s43, s28""")
    for i in range(5):
        a(f"""v_add_u32 v2, {64*i}, v1
        v_mul_u32_u24 v3, 0x199a, v2
        v_lshrrev_b32 v3, 16, v3
        v_mul_u32_u24 v4, 10, v3
        v_sub_u32 v4, v2, v4
        v_mul_u32_u24 v3, 1280, v3
        v_lshl_add_u32 v{10+i}, v4, 4, v3""")
    def dma(u, slot):
        a(f"s_add_u32 s44, s43, {u*32*1280}")
        for i in range(5):
            a(f"s_add_u32 m0, s52, {slot*5120+1024*i}\nbuffer_load_dwordx4 v{10+i}, s[36:39], s44 offen lds")
    dma(0,0); dma(1,1)
    a(f"""v_lshrrev_b32 v2, 5, v1
    v_lshlrev_b32 v2, 4, v2
    v_bfe_u32 v3, v1, 4, 1
    v_lshl_add_u32 v2, v3, 2, v2
    v_bfe_u32 v3, v1, 2, 2
    v_add_u32 v2, v2, v3
    v_mul_u32_u24 v2, 160, v2
    v_add_u32 v2, s52, v2
    v_and_b32 v3, 3, v1
    v_lshl_add_u32 v5, v3, 4, v2
    v_lshl_add_u32 v6, v3, 3, v2
    v_lshlrev_b32 v7, 4, v1
    s_mul_i32 s45, s41, 48
    s_mul_i32 s28, s42, 3
    s_add_u32 s45, s45, s28
    s_mul_i32 s45, s45, 5120
    s_add_u32 s45, s45, {WS_WD}""")
    nonce_fin(a)
    a("s_barrier")
    def rd(slot, reg):
        for dt in range(5):
            for h in range(2):
                if dt < 4: a(f"ds_read_b64_tr_b16 {r(reg+4*dt+2*h,2)}, v5 offset:{slot*5120+h*1280+(dt>>1)*64+(dt&1)*8}")
                else: a(f"ds_read_b64_tr_b16 {r(reg+4*dt+2*h,2)}, v6 offset:{slot*5120+h*1280+128}")
    def st(u, reg):
        for dt in range(5):
            off = u*5120 + dt*1024
            a(f"s_add_u32 s46, s45, {off}\nbuffer_store_dwordx4 {r(reg+4*dt,4)}, v7, {SWS}, s46 offen sc1")
    a("s_waitcnt vmcnt(0)")
    rd(0, 16); rd(1, 36)
    a("s_waitcnt lgkmcnt(0)")
    dma(2, 0)
    st(0, 16); st(1, 36)
    a("s_waitcnt vmcnt(10)")
    rd(0, 56)
    a("s_waitcnt lgkmcnt(0)")
    st(2, 56)
    a(f"""s_waitcnt vmcnt(0)
    s_lshl_b32 s28, s41, 7
    s_lshl_b32 s29, s42, 2
    s_add_u32 s28, s28, s29
    s_add_u32 s28, s28, {FW}""")
    flag_store(a, 's28', 'v2', 'v3')
    stamp(a, 1)
    stamps_out(a)
    a("s_endpgm")

NEG = {}
def cmul(a, d, q, w, t):
    a(f"v_mul_f32 v{d}, v{q}, v{w}\nv_mul_f32 v{d+1}, v{q+1}, v{w}")
    return lambda: a(f"v_fmac_f32 v{d}, v{q+1}, v{NEG[w]}\nv_fmac_f32 v{d+1}, v{q}, v{w+1}")

def conv_wave(a):
    a("s_load_dwordx4 s[32:35], s[0:1], 8\ns_load_dwordx4 s[36:39], s[0:1], 24\ns_load_dwordx2 s[40:41], s[0:1], 40\ns_waitcnt lgkmcnt(0)")
    srd(a, 56, 32, 33, P_BYTES); srd(a, 60, 34, 35, P_BYTES); srd(a, 64, 36, 37, P_BYTES); srd(a, 68, 38, 39, P_BYTES)
    srd(a, 72, 40, 41, 1280)
    a(f"s_mul_i32 s42, s53, 384\ns_lshl_b32 s43, s53, 1\nv_lshlrev_b32 v2, 1, v1\nv_mov_b32 v3, 0")
    PR = 200
    a(f"buffer_load_ushort v199, v3, s[72:75], s43 offen")
    for p in range(3):
        for k in range(4):
            a(f"buffer_load_ushort v{PR+4*p+k}, v2, s[{56+4*k}:{59+4*k}], s42 offen offset:{128*p}")
    srd(a, 8, 22, 23, WS_SIZE)
    nonce_load(a)
    WA = 16; RA = 32
    a(f"""v_lshrrev_b32 v4, 2, v1
    v_lshlrev_b32 v4, 4, v4
    v_and_b32 v5, 3, v1
    v_lshl_add_u32 v4, v5, 2, v4
    v_add_u32 v{WA}, s52, v4""")
    for k in range(1,16): a(f"v_xor_b32 v{WA+k}, {k<<4}, v{WA}")
    a(f"""v_and_b32 v4, 31, v1
    v_lshrrev_b32 v5, 5, v1
    v_and_b32 v6, 15, v4
    v_xor_b32 v5, v5, v6
    v_lshlrev_b32 v5, 4, v5
    v_lshl_add_u32 v4, v4, 8, v5
    v_add_u32 v{RA}, s52, v4""")
    for s in range(1,8): a(f"v_xor_b32 v{RA+s}, {s<<5}, v{RA}")
    KA = 64
    for i in range(16): a(f"v_mov_b32 v{KA+i}, 0")
    YOFF = 5376
    a(f"v_mov_b32 v4, 0x3f80\nds_write_b32 v{WA}, v4 offset:{YOFF}")
    nonce_fin(a)
    a("s_barrier")
    LOG2E = 0x3fb8aa3b
    if OPT['noconv']:
        a(f"s_waitcnt vmcnt(0)\ns_lshl_b32 s28, s53, 2\ns_add_u32 s28, s28, {FY}")
        flag_store(a, 's28', 'v2', 'v3')
        a("s_endpgm")
    a(f"""s_mov_b32 s44, {LOG2E}
    s_mov_b32 s45, 0x3e22f983
    s_mov_b32 s46, 0x41000000
    s_mov_b32 s47, 0x43800000
    s_waitcnt vmcnt(0)
    v_lshlrev_b32 v199, 16, v199
    v_mul_f32 v199, s44, v199
    v_exp_f32 v199, v199
    s_nop 0
    v_cvt_pk_bf16_f32 v199, v199, v199
    v_and_b32 v199, 0xffff0000, v199
    s_mov_b32 s48, 0
    """)
    stamp(a, 1)
    a.lab("Lkg")
    Z, W, W2, V = 40, 42, 44, 46
    X = 80
    a(f"""v_lshlrev_b32 v4, 16, v{PR}
    v_lshlrev_b32 v5, 16, v{PR+1}
    v_lshlrev_b32 v6, 16, v{PR+2}
    v_lshlrev_b32 v7, 16, v{PR+3}
    v_mul_f32 v4, s44, v4
    v_exp_f32 v4, v4
    v_mul_f32 v5, v199, v5
    v_add_f32 v8, v199, v199
    v_cvt_pk_bf16_f32 v4, v4, v4
    v_and_b32 v4, 0xffff0000, v4
    v_mul_f32 v4, v199, v4
    v_mul_f32 v5, s45, v5
    v_mul_f32 v4, s44, v4
    v_mul_f32 v{X}, v6, v8
    v_mul_f32 v{X+1}, -v7, v8
    v_mul_f32 v6, s46, v4
    v_mul_f32 v7, s46, v5
    v_mul_f32 v8, s47, v4
    v_mul_f32 v9, s47, v5
    v_fract_f32 v5, v5
    v_fract_f32 v7, v7
    v_fract_f32 v9, v9
    v_exp_f32 v4, -v4
    v_exp_f32 v6, -v6
    v_exp_f32 v8, -v8
    v_cos_f32 v{Z}, v5
    v_sin_f32 v{Z+1}, v5
    v_cos_f32 v{W}, v7
    v_sin_f32 v{W+1}, v7
    v_cos_f32 v{V}, v9
    v_sin_f32 v{V+1}, v9
    v_mul_f32 v{Z}, v{Z}, v4
    v_mul_f32 v{Z+1}, -v{Z+1}, v4
    v_mul_f32 v{W}, v{W}, v6
    v_mul_f32 v{W+1}, v{W+1}, v6
    v_mul_f32 v{V}, v{V}, v8
    v_mul_f32 v{V+1}, -v{V+1}, v8
    v_sub_f32 v60, 0, v{Z+1}
    v_sub_f32 v61, 0, v{W+1}
    v_sub_f32 v63, 0, v{V+1}""")
    NEG.update({Z: 60, W: 61, W2: 62, V: 63})
    for k in range(8): a(f"v_mov_b32 v{PR+k}, v{PR+4+k}")
    pk = [48, 49, 50, 51]; pki = [0]
    def put(reg, row, isY):
        o = pk[pki[0] % 4]; pki[0] += 1
        a(f"v_cvt_pk_bf16_f32 v{o}, v{reg}, v{reg+1}")
        a(f"ds_write_b32 v{WA+(row&15)}, v{o} offset:{(YOFF if isY else 0)+256*row}")
    YE = [52, 54]; YO = [56, 58]; T0, T1, T2 = 60, 62, 96
    XE = 98
    xs = [(X+2*i, X+2*(i-1), Z, i) for i in range(1,8)]
    xs += [(XE+0, X+0, V, 8), (XE+2, X+4, V, 9), (XE+4, X+8, V, 10), (XE+6, X+12, V, 11)]
    xs += [(XE+8, XE+0, V, 12), (XE+10, XE+4, V, 13), (XE+12, XE+8, V, 14), (XE+14, XE+10, V, 15)]
    xs += [(XE+0, XE+12, V, 16), (XE+2, XE+0, V, 17), (XE+4, XE+2, V, 18), (XE+6, XE+4, V, 19), (XE+8, XE+6, V, 20)]
    f = cmul(a, W2, W, W, T0); put(X, 0, False); f()
    a(f"v_sub_f32 v62, 0, v{W2+1}")
    put(W, 1, True)
    put(W2, 2, True)
    pe, po = W2, W
    pend = []
    for i in range(15):
        do = YO[i % 2]; de = YE[i % 2]
        f1 = cmul(a, do, po, W2, T0)
        f2 = cmul(a, de, pe, W2, T1) if 2*i+4 < 32 else None
        nx = 2 if i < 5 else 1
        x = xs.pop(0) if xs else None
        f3 = cmul(a, x[0], x[1], x[2], T2) if x else None
        for p in pend: put(*p)
        pend = []
        f1()
        if f2: f2()
        if f3: f3()
        pend.append((do, 2*i+3, True))
        if f2: pend.append((de, 2*i+4, True))
        if x: pend.append((x[0], x[3], False))
        if nx == 2:
            x = xs.pop(0)
            f3 = cmul(a, x[0], x[1], x[2], T2)
            put(*pend.pop(0))
            f3()
            pend.append((x[0], x[3], False))
        po, pe = do, de
    for p in pend: put(*p)
    assert not xs
    a("s_waitcnt lgkmcnt(0)")
    FA = 128
    for s in range(8):
        a(f"ds_read_b128 {r(FA+8*s,4)}, v{RA+s}\nds_read_b128 {r(FA+8*s+4,4)}, v{RA+s} offset:{YOFF}")
    for s in range(8):
        a(f"s_waitcnt lgkmcnt({14-2*s})")
        a(f"v_mfma_f32_32x32x16_bf16 {r(KA,16)}, {r(FA+8*s,4)}, {r(FA+8*s+4,4)}, {r(KA,16)}")
    a("s_add_u32 s48, s48, 1\ns_cmp_lt_u32 s48, 3\ns_cbranch_scc1 Lkg")
    stamp(a, 2)
    a(f"""s_lshr_b32 s28, s53, 6
    s_lshl_b32 s28, s28, 7
    s_add_u32 s28, s28, {FU}
    v_and_b32 v4, 15, v1
    v_lshlrev_b32 v4, 2, v4""")
    flag_poll(a, 'v4', 'v5', 's28')
    UR = 180
    a(f"s_lshl_b32 s28, s53, 12\ns_add_u32 s28, s28, {WS_UT}\nv_lshlrev_b32 v3, 4, v1")
    for i in range(4): a(f"buffer_load_dwordx4 {r(UR+4*i,4)}, v3, {SWS}, s28 offen offset:{1024*i} sc1")
    KF = 8320 + 16
    a(f"""s_add_u32 s49, s52, {KF}
    v_and_b32 v4, 31, v1
    v_lshrrev_b32 v5, 5, v1
    v_lshlrev_b32 v6, 4, v4
    v_lshl_add_u32 v6, v5, 3, v6
    v_add_u32 v6, s49, v6
    v_cmp_eq_u32 vcc, 0, v5
    v_lshlrev_b32 v7, 3, v4
    v_lshlrev_b32 v8, 2, v4
    v_add_u32 v8, 256, v8
    v_cndmask_b32 v7, v8, v7, vcc
    v_add_u32 v7, s49, v7
    v_mov_b32 v9, 128
    v_cndmask_b32 v9, v9, 4, vcc
    v_add_u32 v8, v7, v9
    v_lshlrev_b32 v9, 1, v4
    v_lshl_add_u32 v9, v5, 8, v9
    v_add_u32 v9, s49, v9
    v_mov_b32 v10, 0
    v_mov_b32 v11, s49""")
    for i in range(6): a(f"v_cvt_pk_bf16_f32 v{40+i}, v{KA+2*i}, v{KA+2*i+1}")
    a(f"""ds_write_b64 v6, v[40:41]
    ds_write_b32 v7, v42 offset:512
    ds_write_b32 v8, v43 offset:512
    ds_write_b16 v9, v44 offset:1024
    ds_write_b16_d16_hi v9, v44 offset:{1024+64}
    ds_write_b16 v9, v45 offset:{1024+128}
    ds_write_b16_d16_hi v9, v45 offset:{1024+192}
    v_add_u32 v11, -4, v11
    ds_write_b32 v11, v10""")
    def eaddr(dst, chunk, e):
        a(f"""v_sub_u32 v4, {2047-128*chunk-e}, v2
        v_cvt_f32_u32 v4, v4
        v_cvt_pk_bf16_f32 v4, v4, v4
        v_and_b32 v4, 0xffff, v4
        v_lshl_add_u32 v{dst}, v4, 1, v12""")
    a(f"s_sub_u32 s28, s49, {2*17024}\nv_mov_b32 v12, s28")
    EA = 16
    for gi, ch in enumerate((7, 11, 13)):
        for e in range(3): eaddr(EA+3*gi+e, ch, e)
    eaddr(EA+9, 12, 2)
    a(f"""v_lshlrev_b32 v4, 2, v1
    s_add_u32 s28, s49, 250
    v_sub_u32 v{EA+10}, s28, v4
    v_add_u32 v13, s52, v4
    s_waitcnt lgkmcnt(0)""")
    if OPT['dump_kf']:
        a(f"""v_lshlrev_b32 v4, 4, v1
        v_add_u32 v5, s49, v4
        ds_read_b128 v[40:43], v5
        ds_read_b128 v[44:47], v5 offset:1024
        s_lshl_b32 s28, s53, 11
        s_add_u32 s28, s28, {WS_KF}
        s_waitcnt lgkmcnt(0)
        buffer_store_dwordx4 v[40:43], v4, {SWS}, s28 offen
        buffer_store_dwordx4 v[44:47], v4, {SWS}, s28 offen offset:1024""")
    ER = 128
    for ch in range(16):
        if ch <= 7: b = EA; off = [32*(7-ch)]*3; vs = [b, b+1, b+2]
        elif ch <= 11: b = EA+3; off = [64*(11-ch)]*3; vs = [b, b+1, b+2]
        elif ch == 12: vs = [EA+6, EA+7, EA+9]; off = [128, 128, 0]
        elif ch == 13: vs = [EA+6, EA+7, EA+8]; off = [0,0,0]
        else:
            o = 256*(15-ch); vs = [EA+10]*3; off = [o+4, o+2, o]
        c0 = ER + 3*ch
        for e in range(3): a(f"ds_read_u16 v{c0+e}, v{vs[e]} offset:{off[e]}")
        if ch % 4 == 3:
            a("s_waitcnt lgkmcnt(0)")
            for k in range(ch-3, ch+1):
                c = ER + 3*k
                a(f"v_lshl_or_b32 v{c}, v{c+1}, 16, v{c}\nv_lshl_or_b32 v{c+2}, v{c+2}, 16, v{c+1}")
                a(f"ds_write_b32 v13, v{c} offset:{256*k}\nds_write_b32 v13, v{c+2} offset:{4160+256*k}")
    a(f"""s_mov_b64 exec, 0xffff
    ds_write_b32 v13, v10 offset:4096
    ds_write_b32 v13, v10 offset:{4160+4096}
    s_mov_b64 exec, -1
    v_add_u32 v14, s52, v3
    v_mov_b32 v40, 0
    v_mov_b32 v41, 0
    v_mov_b32 v42, 0
    v_mov_b32 v43, 0
    s_mov_b64 exec, 0x3fffffff
    ds_write_b128 v14, v[40:43] offset:8320
    s_mov_b64 exec, -1
    s_waitcnt vmcnt(0)""")
    for i in range(4): a(f"ds_write_b128 v14, {r(UR+4*i,4)} offset:{8800+1024*i}")
    a(f"""v_and_b32 v4, 15, v1
    v_lshrrev_b32 v5, 4, v1
    v_and_b32 v6, 1, v4
    v_sub_u32 v6, 1, v6
    v_lshlrev_b32 v7, 3, v5
    v_sub_u32 v7, v7, v4
    v_sub_u32 v7, v7, v6
    v_add_u32 v7, {2031-256}, v7
    v_lshlrev_b32 v7, 1, v7
    v_mul_u32_u24 v6, 4160, v6
    v_add_u32 v7, v7, v6
    v_add_u32 v16, s52, v7
    v_add_u32 v17, -1024, v16
    v_add_u32 v18, -2048, v16
    v_add_u32 v19, -3072, v16
    v_lshlrev_b32 v6, 5, v4
    v_lshl_add_u32 v6, v5, 4, v6
    s_add_u32 s28, s52, {8800-32}
    v_add_u32 v20, s28, v6""")
    CA = 32
    for i in range(32): a(f"v_mov_b32 v{CA+i}, 0")
    BUF = [64, 128]
    def creads(buf):
        L = []
        for i in range(8):
            aa = i; o = 0 if aa & 1 else 128
            L.append(f"ds_read2_b32 {r(buf+4*aa,2)}, v{16+(aa>>1)} offset0:{o} offset1:{o+1}")
            L.append(f"ds_read2_b32 {r(buf+4*aa+2,2)}, v{16+(aa>>1)} offset0:{o+2} offset1:{o+3}")
            L.append(f"ds_read_b128 {r(buf+32+4*i,4)}, v20 offset:{512*i}")
        return L
    def cadv():
        for v in range(16, 21): a(f"v_add_u32 v{v}, -64, v{v}")
    a("s_waitcnt lgkmcnt(0)")
    stamp(a, 3)
    for x in creads(BUF[0]): a(x)
    cadv()
    a("s_mov_b32 s48, 0")
    a.lab("Lconv")
    for half in range(2):
        cur = BUF[half]; nxt = BUF[1-half]
        rd = creads(nxt)
        a("s_waitcnt lgkmcnt(0)")
        n = 0
        pairs = [(aa, bb) for aa in range(8) for bb in range(8-aa)]
        for (aa, bb) in pairs:
            ac = CA + 4*(aa+bb)
            a(f"v_mfma_f32_16x16x32_bf16 {r(ac,4)}, {r(cur+4*aa,4)}, {r(cur+32+4*bb,4)}, {r(ac,4)}")
            if rd: a(rd.pop(0))
            n += 1
            if n == 26: cadv()
    a("s_add_u32 s48, s48, 1\ns_cmp_lt_u32 s48, 4\ns_cbranch_scc1 Lconv")
    stamp(a, 4)
    a(f"""v_and_b32 v4, 15, v1
    v_lshrrev_b32 v5, 4, v1
    v_lshlrev_b32 v4, 5, v4
    v_lshl_add_u32 v4, v5, 3, v4
    s_lshl_b32 s28, s53, 12
    s_add_u32 s28, s28, {WS_YT}
    s_waitcnt lgkmcnt(0)""")
    for b in range(8):
        a(f"""v_cvt_pk_bf16_f32 v{6+2*b}, v{CA+4*b}, v{CA+4*b+1}
        v_cvt_pk_bf16_f32 v{7+2*b}, v{CA+4*b+2}, v{CA+4*b+3}
        buffer_store_dwordx2 {r(6+2*b,2)}, v4, {SWS}, s28 offen offset:{512*b} sc1""")
    a(f"s_waitcnt vmcnt(0)\ns_lshl_b32 s28, s53, 2\ns_add_u32 s28, s28, {FY}")
    flag_store(a, 's28', 'v2', 'v3')
    stamp(a, 5)
    stamps_out(a)
    a("s_endpgm")

def build():
    a = Asm()
    prologue(a)
    gemm_waves(a)
    a.lab("Lnot_gemm")
    a(f"""s_cmp_eq_u32 {sWAVE}, 7
    s_cbranch_scc1 Laux
    s_sub_u32 s28, {sWAVE}, 4
    s_mul_i32 s52, s28, {CONVSZ}
    s_add_u32 s52, s52, {CONVB}
    s_lshr_b32 s53, {sWG}, 1
    s_mul_i32 s53, s53, 5
    s_add_u32 s53, s53, s28
    s_and_b32 s29, {sWG}, 1
    s_mul_i32 s29, s29, 3
    s_add_u32 s53, s53, s29
    s_add_u32 s28, s28, s29
    s_cmp_eq_u32 s28, 5
    s_cbranch_scc1 Lwd""")
    conv_wave(a)
    a.lab("Lwd")
    wd_wave(a)
    a.lab("Laux")
    aux_wave(a)
    a.lab("Lexit")
    a("s_endpgm")
    a.pad()
    ref = open(f'cdna_kernels/{NAME}.s.ref').read().split('\n')
    hdr = [l for l in ref if l.startswith(';') and not l.startswith('; @launch')]
    out = '\n'.join(hdr) + f"\n; @launch grid=(256,1,1) block=(512,1,1) lds={LDS_TOTAL}\n"
    out += f'.amdgcn_target "amdgcn-amd-amdhsa--gfx950"\n.text\n.globl {NAME}_kernel\n.p2align 8\n.type {NAME}_kernel,@function\n{NAME}_kernel:\n'
    out += a.text()
    out += f""".section .rodata,"a"
.p2align 6
.amdhsa_kernel {NAME}_kernel
  .amdhsa_next_free_vgpr 256
  .amdhsa_next_free_sgpr 102
  .amdhsa_accum_offset 256
  .amdhsa_group_segment_fixed_size 0
  .amdhsa_kernarg_size 120
  .amdhsa_user_sgpr_count 2
  .amdhsa_user_sgpr_kernarg_segment_ptr 1
  .amdhsa_system_sgpr_workgroup_id_x 1
.end_amdhsa_kernel
"""
    return out

if __name__ == '__main__':
    path = f'cdna_kernels/{NAME}.s'
    for x in sys.argv[1:]:
        if x.startswith('-o'): path = x[2:]
        elif '=' in x:
            k, v = x.split('='); OPT[k] = int(v)
        else: OPT[x] = True
    open(path, 'w').write(build())
```
